```python
import torch

def _softmax(x, axis=-1):
    return torch.softmax(x, dim=axis)
def _gelu(x):
    return torch.nn.functional.gelu(x, approximate="tanh")
def _silu(x):
    return torch.nn.functional.silu(x)
def _sigmoid(x):
    return torch.sigmoid(x)
def _layernorm(x, axis=-1, eps=1e-5):
    m = x.mean(dim=axis, keepdim=True)
    v = x.var(dim=axis, keepdim=True, unbiased=False)
    return (x - m) / torch.sqrt(v + eps)
def _scatter_add(tgt, idx, src, axis=0):
    return tgt.clone().index_add_(axis, idx, src)
def _segment_sum(src, seg, n):
    out = torch.zeros((n,) + src.shape[1:], dtype=src.dtype)
    return out.index_add_(0, seg, src)
def _pad(x, pw):
    flat = tuple(v for pair in reversed(pw) for v in pair)
    return torch.nn.functional.pad(x, flat)

kernel_name = 'standalone__softmax_full_bidir__sampling'

def setup_inputs():

    _w = (lambda a: (lambda t: t.to(torch.bfloat16) if t.is_floating_point() else t)(torch.as_tensor(a)))
    B, H, Sq, Skv, Dh = 16, 32, 4, 4096, 128
    return {
        "q": _w((lambda *s: torch.randn(*s, dtype=torch.bfloat16) * 0.8)(B, H, Sq, Dh)),
        "k": _w((lambda *s: torch.randn(*s, dtype=torch.bfloat16) * 0.8)(B, H, Skv, Dh)),
        "v": _w((lambda *s: torch.randn(*s, dtype=torch.bfloat16) * 0.05)(B, H, Skv, Dh)),
    }

def reference(q, k, v):
    scale = q.shape[-1] ** -0.5
    scores = torch.einsum('bhqd,bhkd->bhqk', q, k) * scale
    attn = _softmax(scores, axis=-1)
    return torch.einsum('bhqk,bhkd->bhqd', attn, v)
```

```python
import sys, math, struct

NAME = "standalone__softmax_full_bidir__sampling_kernel"
MAP = "9,10,16,12,14,13,11,8^15,11^18,17,14^19,8,20,28,24,27,21,19^23^27,22^26,22,12^25"
ROLL, RB, TROLL, FBPOS, XBN, CITER = 5, 6, 12, 2, 3, 28

def f32bits(x):
    return struct.unpack("<I", struct.pack("<f", x))[0]

def gen():
    NW, NB, LA, NWG, NG = 4, 4, 2, 256, 16
    mp = [sum(1 << int(b) for b in x.split("^")) for x in MAP.split(",")]
    assert len(mp) == 21
    G, T, W, N, M = mp[0:2], mp[2:5], mp[5:7], mp[7:13], mp[13:21]
    g0, g1 = G[0].bit_length() - 1, G[1].bit_length() - 1
    assert all(bin(x).count("1") == 1 for x in G) and not any(v & (G[0] | G[1] | 0xff) for v in mp[2:])
    assert not any(v >> 20 for v in mp[:12]) and (N[5] >> 20) and not any(v >> 29 for v in mp)
    basis = []
    for v in mp:
        for x in basis: v = min(v, v ^ x)
        assert v; basis.append(v)
    if g1 == g0 - 1: g0, g1 = g1, g0
    assert g1 == g0 + 1
    o = []
    def A(s, c=None):
        o.append(s if c is None else f"{s:<78}; {c}")
    LDSP = 4 * 32768
    LDSL = LDSP + 2 * NW * 2048
    LDSS = LDSL + 256
    lds = LDSS + 16
    hdr = f"""; Decode attention, B=16 H=32 Sq=4 Skv=4096 Dh=128, bf16 in / bf16 out (HBM-bound: 1 GiB of K and V read once).
; @launch grid=({NWG},1,1) block=({NW*64},1,1) lds={lds}
.amdgcn_target "amdgcn-amd-amdhsa--gfx950"
.text
.globl {NAME}
.p2align 8
.type {NAME},@function
{NAME}:"""
    for l in hdr.split("\n"): A(l)
    vOff, vVoff, vQoff = 1, 2, 3
    vM, vL = 4, 5
    vSt, vT1 = 6, 7
    vT0, vMx, vT2, vT3 = 8, 9, 10, 11
    vPB = 12
    vAcc = 16
    vS = 48
    vQ, vQn = 80, 84
    vLoff, vLw, vSW, vSR = 88, 89, 90, 91
    vFl = 93
    vC = 94
    vW = 96
    vBuf = 104
    vFa, vOne, vCO, vCL, vOut, vMr, vSa, vSw = 232, 233, 234, 235, 236, 237, 238, 239
    vX = 240
    nv = 256
    def BUF(b, t): return vBuf + b * 32 + t * 4
    def r4(x): return f"v[{x}:{x+3}]"
    (sWave, sC, sSelLo, sSelHi, sIt, sTmp, sTmp2, sPos, sQA, sQB, sXa, sXm) = range(32, 44)
    sO, sT, sF = 44, 72, 52
    def tpart(t):
        x = 0
        for b in range(3):
            if t >> b & 1: x ^= T[b]
        return x
    def ld(b, t, so=None):
        return f"    buffer_load_dwordx4 {r4(BUF(b,t))}, v{vOff}, s[16:19], s{(sO if so is None else so)+t} offen nt"
    def calc():
        return [f"    s_xor_b32 s{sO+t}, s{sPos}, s{sT+t}" for t in range(8)]
    A("    s_load_dwordx2 s[16:17], s[0:1], 8", "K pointer straight into the stream descriptor s[16:19]")
    A(f"    v_readfirstlane_b32 s{sWave}, v0")
    A(f"    s_cmp_ge_u32 s2, {NWG}", "extra workgroups leave")
    A("    s_cbranch_scc1 L_end")
    for i in range(8):
        A(f"    s_bitcmp1_b32 s2, {i}")
        if i == 0:
            A(f"    s_cselect_b32 s{sT}, 0x{M[i]:x}, 0")
        else:
            A(f"    s_cselect_b32 s{sTmp}, 0x{M[i]:x}, 0")
            A(f"    s_xor_b32 s{sT}, s{sT}, s{sTmp}")
    for i in range(2):
        A(f"    s_bitcmp1_b32 s{sWave}, {6+i}")
        A(f"    s_cselect_b32 s{sTmp}, 0x{W[i]:x}, 0")
        A(f"    s_xor_b32 s{sT}, s{sT}, s{sTmp}")
    A(f"    v_and_b32 v{vT3}, 3, v0")
    A(f"    v_and_b32 v{vT0}, 48, v0")
    A(f"    v_bfe_u32 v{vT2}, v0, 2, 2")
    A(f"    v_lshlrev_b32 v{vT0}, 2, v{vT0}")
    A(f"    v_lshl_add_u32 v{vOff}, v{vT3}, 4, v{vT0}")
    A(f"    v_lshl_add_u32 v{vOff}, v{vT2}, {g0}, v{vOff}")
    A("    s_brev_b32 s18, 4", "0x20000000 bytes")
    A("    s_mov_b32 s19, 0x20000")
    A("    s_waitcnt lgkmcnt(0)")
    for t in range(8):
        if t: A(f"    s_xor_b32 s{sT+t}, s{sT}, 0x{tpart(t):x}")
        A(ld(0, t, sT))
        if t == 0:
            A("    s_load_dwordx2 s[24:25], s[0:1], 0", "Q")
            A("    s_load_dwordx2 s[20:21], s[0:1], 16", "V")
            A("    s_load_dwordx2 s[28:29], s[0:1], 24", "out")
            A("    s_load_dwordx2 s[12:13], s[0:1], 32", "debug")
    A(f"    v_and_b32 v0, 63, v0")
    A(f"    s_lshr_b32 s{sWave}, s{sWave}, 6")
    A(f"    v_lshl_add_u32 v{vQoff}, v{vT3}, 8, v{vT0}")
    A(f"    v_lshl_add_u32 v{vQoff}, v{vT2}, 4, v{vQoff}")
    A(f"    s_lshr_b32 s{sQA}, s{sT}, 20")
    A(f"    s_lshl_b32 s{sQA}, s{sQA}, 10", "byte offset of head A in q / out")
    A(f"    s_xor_b32 s{sQB}, s{sQA}, 0x{(N[5] >> 20) << 10:x}", "head B")
    A("    s_mov_b32 s26, 0x80000")
    A("    s_mov_b32 s27, 0x20000")
    A(f"    v_mov_b32 v{vFa}, 0")
    A("    s_waitcnt lgkmcnt(0)")
    A(f"    buffer_load_dwordx4 {r4(vQ)}, v{vQoff}, s[24:27], s{sQA} offen")
    A(f"    buffer_load_dwordx4 {r4(vQn)}, v{vQoff}, s[24:27], s{sQB} offen")
    A("    ; tile 1")
    A(f"    s_mov_b32 s{sPos}, 0x{N[0]:x}")
    for x in calc(): A(x)
    for t in range(8):
        A(ld(1, t))
    A(f"    s_mov_b32 s{sPos}, 0x{N[1]:x}")
    for x in calc(): A(x)
    A(f"    v_and_b32 v{vT1}, 15, v0")
    A(f"    v_bfe_u32 v{vVoff}, v0, 4, 1")
    A(f"    v_lshlrev_b32 v{vVoff}, {g0}, v{vVoff}")
    A(f"    v_lshl_add_u32 v{vVoff}, v{vT1}, 4, v{vVoff}")
    A(f"    v_lshrrev_b32 v{vMx}, 5, v0")
    A(f"    v_lshl_add_u32 v{vVoff}, v{vMx}, {g1}, v{vVoff}")
    A(f"    s_mov_b32 s{sC}, 0x{f32bits((128 ** -0.5) * math.log2(math.e)):08x}", "128^-0.5 * log2(e)")
    A(f"    s_mov_b32 s{sSelLo}, 0x05040100")
    A(f"    s_mov_b32 s{sSelHi}, 0x07060302")
    A("    s_mov_b32 s30, 0x80000")
    A("    s_mov_b32 s31, 0x20000")
    A(f"    v_lshlrev_b32 v{vLoff}, 1, v{vT0}")
    A(f"    v_lshl_add_u32 v{vSR}, v{vT3}, 5, v{vLoff}")
    A(f"    v_lshl_add_u32 v{vCO}, v{vT2}, 2, v{vSR}")
    A(f"    v_lshl_add_u32 v{vLoff}, v{vT3}, 9, v{vLoff}")
    A(f"    s_lshl_b32 s{sTmp2}, s{sWave}, 11")
    A(f"    s_add_u32 s{sTmp2}, s{sTmp2}, {LDSP}")
    A(f"    v_add_u32 v{vLoff}, s{sTmp2}, v{vLoff}", "partial O of this wave")
    A(f"    v_lshlrev_b32 v{vMr}, 4, v{vT3}")
    A(f"    v_add_u32 v{vMr}, {LDSL}, v{vMr}", "row q of the l / max tables")
    A(f"    s_lshl_b32 s{sTmp}, s{sWave}, 2")
    A(f"    v_add_u32 v{vLw}, s{sTmp}, v{vMr}", "this wave's entry in that row")
    A(f"    v_mov_b32 v{vSa}, {LDSS}")
    A(f"    v_add_u32 v{vSw}, s{sTmp}, v{vSa}", "this wave's stage word")
    A(f"    s_lshl_b32 s{sTmp}, s{sWave}, 15")
    A(f"    v_add_u32 v{vSW}, s{sTmp}, v{vCO}", "score write address")
    A(f"    v_add_u32 v{vSR}, s{sTmp}, v{vSR}", "score read address")
    A(f"    s_lshl_b32 s{sTmp}, s{sWave}, 9")
    A(f"    s_add_u32 s{sTmp}, s{sTmp}, {LDSP}")
    A(f"    v_add_u32 v{vCO}, s{sTmp}, v{vCO}", "merge: O address (q = wave)")
    A(f"    s_lshl_b32 s{sTmp}, s{sWave}, 4")
    A(f"    s_add_u32 s{sTmp}, s{sTmp}, {LDSL}")
    A(f"    v_mov_b32 v{vCL}, s{sTmp}", "merge: l row (q = wave)")
    A(f"    s_lshl_b32 s{sTmp}, s{sWave}, 8")
    A(f"    v_lshl_add_u32 v{vOut}, v0, 2, s{sTmp}", "out offset inside a head")
    A(f"    ds_write_b32 v{vSw}, v{vFa}", "stage 0")
    A(f"    v_mov_b32 v{vMx}, 0xff800000")
    A(f"    s_mov_b32 s{sIt}, 0")
    A(f"    v_mov_b32 v{vFl}, 0")
    A(f"    v_mov_b32 v{vOne}, 1")
    A("    s_mov_b64 vcc, 0", "vcc != 0: wide window")
    A(f"    s_mov_b64 s[{sF}:{sF+1}], 0")
    spread = sum(1 << (1 + int((k + 0.1) * 26 / XBN)) for k in range(XBN))
    A(f"    s_getreg_b32 s{sTmp}, hwreg(HW_REG_XCC_ID)")
    A(f"    s_bitcmp1_b32 s{sTmp}, 0")
    A(f"    s_mov_b32 s{sXm}, 0x{spread:x}")
    A(f"    s_cselect_b32 s{sXm}, 0x0, s{sXm}")
    A(f"    s_lshl_b32 s{sXm}, s{sXm}, s{sWave}")
    for i in range(32):
        A(f"    v_mov_b32 v{vAcc+i}, 0")
    A(f"    v_mov_b32 v{vL}, 0")
    A("    s_waitcnt lgkmcnt(0)")
    A("    s_barrier", "stage words are initialised")

    def adv(b):
        if b == 0 or b == 2:
            r = [f"    s_xor_b32 s{sPos}, s{sPos}, 0x{N[0]:x}"]
        elif b == 3:
            r = [f"    s_xor_b32 s{sPos}, s{sPos}, 0x{N[0]^N[1]:x}"]
        else:
            r = [f"    s_add_u32 s{sTmp2}, s{sIt}, 1"]
            for i, val in enumerate(N[2:]):
                r.append(f"    s_bitcmp1_b32 s{sTmp2}, {i}")
                if i == 0:
                    r.append(f"    s_cselect_b32 s{sPos}, 0x{val:x}, 0")
                else:
                    r.append(f"    s_cselect_b32 s{sTmp}, 0x{val:x}, 0")
                    r.append(f"    s_xor_b32 s{sPos}, s{sPos}, s{sTmp}")
        return r + calc()
    lab = [0]
    def emit(C, b, roll, fb, post=True):
        L = [ld((b + LA) % NB, t) for t in range(8)]
        n = len(C)
        pos = [int((i + 0.5) * n / 8) for i in range(8)]
        A(f"    s_waitcnt vmcnt({8*(LA-1)})")
        if fb and b == (FBPOS + 1) % NB:
            A(f"    v_readfirstlane_b32 s{sF}, v{vFl}", "did some wave already start the next iteration?")
            A(f"    s_bitcmp1_b32 s{sXm}, s{sIt}")
            A(f"    s_cselect_b32 s{sF+1}, 1, 0")
            A("    s_nop 1")
            A(f"    s_mov_b64 vcc, s[{sF}:{sF+1}]")
        nx = 0
        if b == 0 or (fb and b == FBPOS):
            A("    s_mov_b64 exec, 1")
            if b == 0:
                A(f"    global_store_dword v{vFa}, v{vOne}, s[12:13]", "progress flag of this iteration"); nx += 1
            if fb and b == FBPOS:
                A(f"    global_load_dword v{vFl}, v{vFa}, s[12:13] offset:4 sc1"); nx += 1
            A("    s_mov_b64 exec, -1")
        def wn(r, k):
            return r - 1 + (nx if k < r - 1 else 0)
        issued = 0
        for i, x in enumerate(C):
            while issued < 8 and pos[issued] == i:
                if fb:
                    lab[0] += 1
                    A(f"    s_cbranch_vccnz L_w{lab[0]}")
                    A(f"    s_waitcnt vmcnt({wn(roll, issued)})")
                    A(f"L_w{lab[0]}:")
                    A(f"    s_waitcnt vmcnt({wn(RB, issued)})")
                else:
                    A(f"    s_waitcnt vmcnt({wn(roll, issued)})")
                A(L[issued]); issued += 1
            A(x)
        assert issued == 8
        if post:
            for x in adv(b): A(x)

    def ktile(b):
        C = []
        c = C.append
        for t in range(8):
            c(f"    v_mfma_f32_16x16x32_bf16 {r4(vS+4*t)}, {r4(BUF(b,t))}, {r4(vQ)}, 0")
        c("    s_nop 0")
        def op(t, k):
            tp, u = t & 3, t >> 2
            h = (tp + k) & 3
            rot = (4 * (tp - h)) % 16
            X = vS + 4 * t + tp
            if k < 3:
                return f"    v_add_f32_dpp v{X}, v{vS+4*t+h}, v{X} row_ror:{rot} row_mask:0xf bank_mask:0xf"
            return f"    v_add_f32_dpp v{vC+u}, v{vS+4*t+h}, v{X} row_ror:{rot} row_mask:0xf bank_mask:0x{1<<tp:x}"
        for t in range(8): c(op(t, 1))
        for t in (0, 4, 1, 5): c(op(t, 2))
        for a, b2 in ((0, 2), (4, 6), (1, 3), (5, 7)):
            c(op(a, 3)); c(op(b2, 2))
        c("    s_nop 0")
        c(op(2, 3)); c("    s_nop 0"); c(op(6, 3)); c("    s_nop 0"); c(op(3, 3)); c("    s_nop 0"); c(op(7, 3))
        c(f"    ds_write_b32 v{vSW}, v{vC} offset:{b*512}")
        c(f"    ds_write_b32 v{vSW}, v{vC+1} offset:{b*512+16}")
        c(f"    v_max3_f32 v{vMx}, v{vC}, v{vC+1}, v{vMx}")
        return C
    def perm(b, j, p):
        sel = sSelHi if (j & 1) else sSelLo
        return f"    v_perm_b32 v{vS+4*j+p}, v{BUF(b,2*p+1)+(j>>1)}, v{BUF(b,2*p)+(j>>1)}, s{sel}"
    def pv(j, pb):
        return f"    v_mfma_f32_16x16x32_bf16 {r4(vAcc+4*j)}, {r4(vS+4*j)}, {r4(pb)}, {r4(vAcc+4*j)}"
    def sread(b):
        return [f"    ds_read_b128 {r4(vW)}, v{vSR} offset:{b*512}", f"    ds_read_b128 {r4(vW+4)}, v{vSR} offset:{b*512+16}"]
    def softmax(pb):
        C = ["    s_waitcnt lgkmcnt(0)"]
        C += [f"    v_fma_f32 v{vW+t}, v{vW+t}, s{sC}, -v{vM}" for t in range(8)]
        C += [f"    v_exp_f32 v{vW+t}, v{vW+t}" for t in range(8)]
        C += ["    s_nop 0"]
        C += [f"    v_cvt_pk_bf16_f32 v{pb+p}, v{vW+2*p}, v{vW+2*p+1}" for p in range(4)]
        return C
    ladds = [f"    v_add_f32 v{vT0}, v{vW}, v{vW+1}",
             f"    v_add_f32 v{vT2}, v{vW+2}, v{vW+3}",
             f"    v_add_f32 v{vT3}, v{vW+4}, v{vW+5}",
             f"    v_add_f32 v{vL}, v{vL}, v{vW+6}",
             f"    v_add_f32 v{vT0}, v{vT0}, v{vW+7}",
             f"    v_add_f32 v{vT2}, v{vT2}, v{vT3}",
             f"    v_add_f32 v{vL}, v{vL}, v{vT0}",
             f"    v_add_f32 v{vL}, v{vL}, v{vT2}"]
    def vtile(b):
        C = sread(b)
        C += [perm(b, j, p) for j in range(8) for p in range(4)]
        C += softmax(vPB) + ladds[:2]
        for j in range(8):
            C.append(pv(j, vPB))
            if j + 2 < len(ladds): C.append(ladds[j + 2])
        return C
    def set_stage(k):
        A(f"    v_mov_b32 v{vSt}, {k}")
        A(f"    ds_write_b32 v{vSw}, v{vSt}", f"stage {k}: written after the data it announces")
    def guarded(k, reads):
        lab[0] += 1
        A(f"L_p{lab[0]}:", f"stage words first, data behind them; again until all four waves reached stage {k}")
        A(f"    ds_read_b128 {r4(vW)}, v{vSa}")
        for x in reads: A(x)
        A("    s_waitcnt lgkmcnt(0)")
        A(f"    v_min3_u32 v{vW}, v{vW}, v{vW+1}, v{vW+2}")
        A(f"    v_min_u32 v{vW}, v{vW}, v{vW+3}")
        A("    s_nop 0")
        A(f"    v_readfirstlane_b32 s{sTmp}, v{vW}")
        A("    s_nop 1")
        A(f"    s_cmp_lt_u32 s{sTmp}, {k}")
        A(f"    s_cbranch_scc1 L_p{lab[0]}")
    def publish_max(h):
        A(f"    ; this wave's row max of head {'AB'[h]} -> LDS")
        A(f"    v_mov_b32 v{vT2}, v{vMx}")
        A("    s_nop 1")
        A(f"    v_permlane32_swap_b32 v{vMx}, v{vT2}")
        A(f"    v_max_f32 v{vMx}, v{vMx}, v{vT2}")
        A(f"    v_mov_b32 v{vT2}, v{vMx}")
        A("    s_nop 1")
        A(f"    v_permlane16_swap_b32 v{vMx}, v{vT2}")
        A(f"    v_max_f32 v{vMx}, v{vMx}, v{vT2}")
        A("    s_nop 1")
        A(f"    v_max_f32_dpp v{vMx}, v{vMx}, v{vMx} row_ror:4 row_mask:0xf bank_mask:0xf")
        A("    s_nop 1")
        A(f"    v_max_f32_dpp v{vMx}, v{vMx}, v{vMx} row_ror:8 row_mask:0xf bank_mask:0xf")
        A(f"    ds_write_b32 v{vLw}, v{vMx} offset:{128 + h*64}")
        set_stage(h + 1)
    def fetch_max(h, dst):
        A(f"    ; exact row max of head {'AB'[h]} over all four waves, scaled")
        guarded(h + 1, [f"    ds_read_b128 {r4(vX)}, v{vMr} offset:{128 + h*64}"])
        A(f"    v_max3_f32 v{vX}, v{vX}, v{vX+1}, v{vX+2}")
        A(f"    v_max_f32 v{vX}, v{vX}, v{vX+3}")
        A(f"    v_mul_f32 v{dst}, s{sC}, v{vX}")
    def dump_l(h):
        return [f"    v_mov_b32 v{vT2}, v{vL}", "    s_nop 1",
                f"    v_permlane32_swap_b32 v{vL}, v{vT2}",
                f"    v_add_f32 v{vL}, v{vL}, v{vT2}",
                f"    v_mov_b32 v{vT2}, v{vL}", "    s_nop 1",
                f"    v_permlane16_swap_b32 v{vL}, v{vT2}",
                f"    v_add_f32 v{vL}, v{vL}, v{vT2}",
                f"    ds_write_b32 v{vLw}, v{vL} offset:{h*64}"]
    def dump_o(h):
        A("    s_mov_b32 exec_lo, 0x000f000f")
        A("    s_mov_b32 exec_hi, 0x000f000f")
        for j in range(8):
            A(f"    ds_write_b128 v{vLoff}, {r4(vAcc+4*j)} offset:{h*NW*2048 + j*16}")
        A("    s_mov_b64 exec, -1")
    def merge(h):
        A(f"    ; head {'AB'[h]}, row q = wave: sum the four partials, normalise, store")
        R = [f"    ds_read_b128 {r4(vX)}, v{vCL} offset:{h*64}"]
        for w in range(NW):
            R.append(f"    ds_read_b32 v{vX+4+2*w}, v{vCO} offset:{(h*NW+w)*2048}")
            R.append(f"    ds_read_b32 v{vX+5+2*w}, v{vCO} offset:{(h*NW+w)*2048+16}")
        if h == 0:
            guarded(3, R)
        else:
            for x in R: A(x)
        A("    s_waitcnt lgkmcnt(8)")
        A(f"    v_add_f32 v{vX}, v{vX}, v{vX+1}")
        A(f"    v_add_f32 v{vX+2}, v{vX+2}, v{vX+3}")
        A(f"    v_add_f32 v{vX}, v{vX}, v{vX+2}")
        A(f"    v_rcp_f32 v{vX}, v{vX}")
        A("    s_waitcnt lgkmcnt(4)")
        A(f"    v_add_f32 v{vX+4}, v{vX+4}, v{vX+6}")
        A(f"    v_add_f32 v{vX+5}, v{vX+5}, v{vX+7}")
        A("    s_waitcnt lgkmcnt(0)")
        A(f"    v_add_f32 v{vX+8}, v{vX+8}, v{vX+10}")
        A(f"    v_add_f32 v{vX+9}, v{vX+9}, v{vX+11}")
        A(f"    v_add_f32 v{vX+4}, v{vX+4}, v{vX+8}")
        A(f"    v_add_f32 v{vX+5}, v{vX+5}, v{vX+9}")
        A(f"    v_mul_f32 v{vX+4}, v{vX+4}, v{vX}")
        A(f"    v_mul_f32 v{vX+5}, v{vX+5}, v{vX}")
        A(f"    v_cvt_pk_bf16_f32 v{vX+12}, v{vX+4}, v{vX+5}")
        A(f"    buffer_store_dword v{vX+12}, v{vOut}, s[28:31], s{sQB if h else sQA} offen")

    A(".p2align 6")
    A("L_kloop:")
    for b in range(NB):
        if b == NB - LA:
            A(f"    s_cmp_lg_u32 s{sIt}, {NG-1}")
            A("    s_cbranch_scc1 L_nosw")
            A("    s_mov_b64 s[16:17], s[20:21]", "the load stream moves on to V")
            A(f"    v_mov_b32 v{vOff}, v{vVoff}")
            A("L_nosw:")
        emit(ktile(b), b, ROLL, 1)
    A(f"    v_add_u32 v{vSW}, {NB*512}, v{vSW}")
    A(f"    v_add_u32 v{vFa}, 4, v{vFa}")
    A(f"    s_add_u32 s{sIt}, s{sIt}, 1")
    A(f"    s_cmp_lg_u32 s{sIt}, {NG//2}")
    A("    s_cbranch_scc1 L_kchk")
    publish_max(0)
    for i in range(4):
        A(f"    v_mov_b32 v{vQ+i}, v{vQn+i}")
    A("    s_waitcnt lgkmcnt(1)")
    A(f"    v_mov_b32 v{vMx}, 0xff800000")
    A("L_kchk:")
    A(f"    s_cmp_lg_u32 s{sIt}, {NG//2 + 4}")
    A("    s_cbranch_scc1 L_kc2")
    fetch_max(0, vM)
    A("L_kc2:")
    A(f"    s_cmp_lt_u32 s{sIt}, {NG}")
    A("    s_cbranch_scc1 L_kloop")
    publish_max(1)
    A(".p2align 6")
    A("L_vloop:")
    for b in range(NB):
        emit(vtile(b), b, ROLL, 1)
    A(f"    v_add_u32 v{vSR}, {NB*512}, v{vSR}")
    A(f"    v_add_u32 v{vFa}, 4, v{vFa}")
    A(f"    s_add_u32 s{sIt}, s{sIt}, 1")
    A(f"    s_cmp_lg_u32 s{sIt}, {NG + NG//2}")
    A("    s_cbranch_scc1 L_vc1")
    for x in dump_l(0): A(x)
    dump_o(0)
    set_stage(3)
    A(f"    v_mov_b32 v{vM}, v{vMx}")
    A("    s_waitcnt lgkmcnt(1)")
    for i in range(32):
        A(f"    v_mov_b32 v{vAcc+i}, 0")
    A(f"    v_mov_b32 v{vL}, 0")
    A("L_vc1:")
    A(f"    s_cmp_lg_u32 s{sIt}, {NG + 4}")
    A("    s_cbranch_scc1 L_vc3")
    fetch_max(1, vMx)
    A("L_vc3:")
    A(f"    s_cmp_lg_u32 s{sIt}, {CITER}")
    A("    s_cbranch_scc1 L_vc2")
    merge(0)
    A("L_vc2:")
    A(f"    s_cmp_lt_u32 s{sIt}, {2*NG - 1}")
    A("    s_cbranch_scc1 L_vloop")
    emit(vtile(0), 0, TROLL, 0)
    emit(vtile(1), 1, TROLL, 0, post=False)
    for x in sread(2) + softmax(vQ) + ladds + sread(3) + softmax(vQn) + ladds + dump_l(1): A(x)
    A("    s_waitcnt vmcnt(8)")
    for j in range(8):
        for p in range(4): A(perm(2, j, p))
        if j: A(pv(j - 1, vQ))
    A("    s_nop 0")
    A(pv(7, vQ))
    for p in range(4):
        A(f"    s_waitcnt vmcnt({6-2*p})")
        for j in range(8): A(perm(3, j, p))
    for j in range(8): A(pv(j, vQn))
    dump_o(1)
    A("    s_waitcnt lgkmcnt(0)")
    A("    s_barrier")
    merge(1)
    A("L_end:")
    A("    s_endpgm")
    A('.section .rodata,"a"')
    A(".p2align 6")
    A(f".amdhsa_kernel {NAME}")
    A(f"  .amdhsa_next_free_vgpr {nv}")
    A(f"  .amdhsa_next_free_sgpr 80")
    A(f"  .amdhsa_accum_offset {(nv+3)//4*4}")
    A("  .amdhsa_group_segment_fixed_size 0")
    A("  .amdhsa_kernarg_size 48")
    A("  .amdhsa_user_sgpr_count 2")
    A("  .amdhsa_user_sgpr_kernarg_segment_ptr 1")
    A("  .amdhsa_system_sgpr_workgroup_id_x 1")
    A(".end_amdhsa_kernel")
    return "\n".join(o) + "\n"

if __name__ == "__main__":
    open(sys.argv[1], "w").write(gen())
```
